```python
import torch

def _softmax(x, axis=-1):
    return torch.softmax(x, dim=axis)
def _gelu(x):
    return torch.nn.functional.gelu(x, approximate="tanh")
def _silu(x):
    return torch.nn.functional.silu(x)
def _sigmoid(x):
    return torch.sigmoid(x)
def _layernorm(x, axis=-1, eps=1e-5):
    m = x.mean(dim=axis, keepdim=True)
    v = x.var(dim=axis, keepdim=True, unbiased=False)
    return (x - m) / torch.sqrt(v + eps)
def _scatter_add(tgt, idx, src, axis=0):
    return tgt.clone().index_add_(axis, idx, src)
def _segment_sum(src, seg, n):
    out = torch.zeros((n,) + src.shape[1:], dtype=src.dtype)
    return out.index_add_(0, seg, src)
def _pad(x, pw):
    flat = tuple(v for pair in reversed(pw) for v in pair)
    return torch.nn.functional.pad(x, flat)

kernel_name = 'parallel_sum__spectral_gfnet__glu_gated_bilinear__prompt'

def setup_inputs():

    _w = (lambda a: (lambda t: t.to(torch.bfloat16) if t.is_floating_point() else t)(torch.as_tensor(a)))
    def _A_setup():
        B, S, D = 1, 2048, 512
        Df = D // 2 + 1
        return {
            "x": _w((lambda *s: torch.randn(*s, dtype=torch.bfloat16) * 0.05)(B, S, D)),
            "w_r": _w((lambda *s: torch.randn(*s, dtype=torch.bfloat16) * 0.4)(S, Df) * 0.02),
            "w_i": _w((lambda *s: torch.randn(*s, dtype=torch.bfloat16) * 0.4)(S, Df) * 0.02),
        }
    _A_in = _A_setup()

    def _B_setup():
        B, S, D, F = 1, 2048, 512, 1792
        return {
            "x": _w((lambda *s: torch.randn(*s, dtype=torch.bfloat16) * 0.05)(B, S, D)),
            "w_gate": _w((lambda *s: torch.randn(*s, dtype=torch.bfloat16) * 0.2)(D, F) * (D ** -0.5)),
            "w_up": _w((lambda *s: torch.randn(*s, dtype=torch.bfloat16) * 0.2)(D, F) * (D ** -0.5)),
            "w_down": _w((lambda *s: torch.randn(*s, dtype=torch.bfloat16) * 0.2)(F, D) * (F ** -0.5)),
        }
    _B_in = _B_setup()

    return {
        "A_x": _A_in["x"],
        "A_w_r": _A_in["w_r"],
        "A_w_i": _A_in["w_i"],
        "B_x": _B_in["x"],
        "B_w_gate": _B_in["w_gate"],
        "B_w_up": _B_in["w_up"],
        "B_w_down": _B_in["w_down"],
    }

def reference(A_x, A_w_r, A_w_i, B_x, B_w_gate, B_w_up, B_w_down):
    def _A_ref(x, w_r, w_i):
        B, S, D = x.shape
        X = (lambda x, axes=(-2,-1): torch.fft.rfft2(x.float(), dim=axes))(x, axes=(-2, -1))
        W = w_r + 1j * w_i
        X = X * W
        y = (lambda x, s, axes=(-2,-1): torch.fft.irfft2(x, s=s, dim=axes).to(torch.bfloat16))(X, (S, D), axes=(-2, -1))
        return y

    def _B_ref(x, w_gate, w_up, w_down):
        g = torch.einsum("bsd,df->bsf", x, w_gate)
        u = torch.einsum("bsd,df->bsf", x, w_up)
        h = g * u
        return torch.einsum("bsf,fd->bsd", h, w_down)

    x = A_x
    xn = _layernorm(x, axis=-1)
    return x + _A_ref(xn, A_w_r, A_w_i) + _B_ref(xn, B_w_gate, B_w_up, B_w_down)
```

```python
import re

TRANS = ("v_exp_f32", "v_log_f32", "v_rcp_f32", "v_rsq_f32", "v_sqrt_f32", "v_sin_f32", "v_cos_f32")

def _regs(tok):
    tok = tok.strip()
    tok = tok.lstrip('-')
    m = re.fullmatch(r"abs\((.*)\)", tok)
    if m: tok = m.group(1)
    m = re.fullmatch(r"([vas])\[(\d+):(\d+)\]", tok)
    if m:
        return [(m.group(1), i) for i in range(int(m.group(2)), int(m.group(3)) + 1)]
    m = re.fullmatch(r"([vas])(\d+)", tok)
    if m:
        return [(m.group(1), int(m.group(2)))]
    if tok == "vcc": return [('s', 106), ('s', 107)]
    if tok == "exec": return [('s', 126), ('s', 127)]
    if tok == "m0": return [('s', 124)]
    return []

class Ins:
    __slots__ = ("text", "op", "kind", "dst", "src", "srcA", "srcC", "passes", "states", "dpp", "lds_dma", "wide_store")
    def __init__(self, text):
        self.text = text
        t = text.split(";")[0].strip()
        self.dst = []; self.src = []; self.srcA = []; self.srcC = []; self.passes = 0; self.states = 1
        self.dpp = False; self.lds_dma = False; self.wide_store = False
        if t.endswith(":") or t.startswith(".") or not t:
            self.op = t; self.kind = "label" if t.endswith(":") else "dir"; self.states = 0
            return
        parts = t.split(None, 1)
        op = parts[0]; self.op = op
        rest = parts[1] if len(parts) > 1 else ""
        ops = [o for o in re.split(r",\s*(?![^\[]*\])", rest)]
        if ops:
            last = ops[-1].split()
            mods = last[1:] if last else []
            ops[-1] = last[0] if last else ""
        else:
            mods = []
        base = re.sub(r"_(e32|e64|dpp|sdwa)$", "", op)
        if op.startswith("v_mfma"):
            self.kind = "mfma"
            self.dst = _regs(ops[0]); self.srcA = _regs(ops[1]) + _regs(ops[2]); self.srcC = _regs(ops[3])
            self.src = self.srcA + self.srcC
            self.passes = 4 if "16x16x32" in op else 8
        elif op.startswith("v_"):
            self.kind = "trans" if base in TRANS else "valu"
            if op.startswith("v_dot"): self.kind = "dot"
            self.dpp = op.endswith("_dpp")
            if base.startswith("v_cmp"):
                self.dst = _regs(ops[0]); self.src = sum((_regs(o) for o in ops[1:]), [])
            elif base.startswith("v_permlane"):
                self.dst = _regs(ops[0]) + _regs(ops[1]); self.src = list(self.dst)
            elif base in ("v_add_co_u32", "v_addc_co_u32", "v_sub_co_u32"):
                self.dst = _regs(ops[0]) + _regs(ops[1]); self.src = sum((_regs(o) for o in ops[2:]), [])
            else:
                self.dst = _regs(ops[0]); self.src = sum((_regs(o) for o in ops[1:]), [])
                if base in ("v_fmac_f32", "v_dot2c_f32_bf16") or self.dpp: self.src += self.dst
                if base == "v_cndmask_b32" and len(ops) == 3: self.src += _regs("vcc")
        elif op.startswith("ds_"):
            self.kind = "ds"
            if "read" in op or "permute" in op or "swizzle" in op:
                self.dst = _regs(ops[0]); self.src = sum((_regs(o) for o in ops[1:]), [])
            else:
                self.src = sum((_regs(o) for o in ops), [])
        elif op.startswith("buffer_") or op.startswith("global_"):
            self.kind = "vmem"
            if "lds" in mods:
                self.lds_dma = True
                self.src = sum((_regs(o) for o in ops), []) + _regs("m0")
            elif "load" in op:
                self.dst = _regs(ops[0]); self.src = sum((_regs(o) for o in ops[1:]), [])
                if "d16" in op: self.src += self.dst
            else:
                self.src = sum((_regs(o) for o in ops), [])
                if op.endswith("x4") or op.endswith("x3"):
                    self.wide_store = True
                    self.srcA = _regs(ops[0]) if op.startswith("buffer_") else _regs(ops[1])
        elif op == "s_nop":
            self.kind = "nop"; self.states = int(ops[0], 0) + 1
        elif op.startswith("s_"):
            self.kind = "salu"
            if op.startswith("s_cmp") or op.startswith("s_bitcmp") or op.startswith("s_cbranch") or op in ("s_branch", "s_waitcnt", "s_barrier", "s_endpgm", "s_sleep", "s_setprio"):
                self.src = sum((_regs(o) for o in ops), [])
            else:
                self.dst = _regs(ops[0]); self.src = sum((_regs(o) for o in ops[1:]), [])
        else:
            raise ValueError("unknown instr: " + text)

def is_valu(i): return i.kind in ("valu", "trans", "dot")

def need_states(p, c):
    n = 0
    pd = set(p.dst); cs = set(c.src); cd = set(c.dst)
    if is_valu(p):
        vd = {r for r in pd if r[0] in "va"}; sd = {r for r in pd if r[0] == 's'}
        if c.kind == "mfma" and vd & cs: n = max(n, 2)
        if c.kind == "mfma" and ('s', 126) in sd: n = max(n, 4)
        if is_valu(c):
            if vd & cs:
                if c.op.startswith("v_readfirstlane") or c.op.startswith("v_readlane"): n = max(n, 1)
                if c.op.startswith("v_permlane") or c.dpp: n = max(n, 2)
                if p.kind == "trans" and c.kind != "trans": n = max(n, 1)
                if p.kind == "trans": n = max(n, 1)
            if p.kind == "dot" and (vd & (cs | cd)) and not (c.op == p.op and not (vd & set(c.src[:-1]))): n = max(n, 3)
            if sd & cs:
                n = max(n, 4 if (c.op.startswith("v_readlane") or c.op.startswith("v_writelane")) else 2)
            if ('s', 126) in sd: n = max(n, 5)
        if p.kind == "dot" and c.kind in ("vmem", "ds", "mfma") and vd & cs: n = max(n, 3)
        if p.kind == "trans" and c.kind in ("vmem", "ds") and vd & cs: n = max(n, 1)
        if c.kind == "vmem" and sd & cs: n = max(n, 5)
        if c.kind == "salu" and sd & cs: n = max(n, 1)
    elif p.kind == "mfma":
        big = {4: 8, 8: 12}[p.passes]
        if c.kind == "mfma":
            if pd & set(c.srcA): n = max(n, big)
            if pd & set(c.srcC):
                same = (p.dst == c.srcC and p.passes == c.passes)
                if not same: n = max(n, {4: 6, 8: 10}[p.passes])
            elif pd & cd:
                n = max(n, {4: 6, 8: 10}[p.passes])
        elif is_valu(c) or c.kind in ("vmem", "ds"):
            if pd & (cs | cd): n = max(n, big)
        if is_valu(c) and set(p.srcC) & cd: n = max(n, {4: 3, 8: 7}[p.passes])
    elif p.kind == "salu":
        if ('s', 124) in pd and c.lds_dma: n = max(n, 1)
    elif p.kind == "vmem" and p.wide_store:
        if set(p.srcA) & cd: n = max(n, 2 if is_valu(c) else 1)
    return n

class Asm:
    def __init__(self):
        self.ins = []
        self.vm = []
        self.lg = []
        self.nlabel = 0
        self.ool = []
    def e(self, text):
        for line in text.split("\n"):
            line = line.strip()
            if not line: continue
            c = Ins(line)
            if c.kind not in ("label", "dir"):
                dist = 0; pad = 0
                for p in reversed(self.ins):
                    if dist >= 20: break
                    if p.kind in ("label", "dir"): continue
                    n = need_states(p, c)
                    if n > dist: pad = max(pad, n - dist)
                    dist += p.states
                while pad > 0:
                    k = min(pad, 16)
                    self.ins.append(Ins(f"s_nop {k-1}")); pad -= k
            self.ins.append(c)
    def label(self, base="L"):
        self.nlabel += 1
        return f"{base}_{self.nlabel}"
    def vmem(self, text, tag=None):
        if len(self.vm) >= 63:
            self.e(f"s_waitcnt vmcnt(62)"); self.vm = self.vm[-62:]
        self.e(text); self.vm.append(tag)
    def ds(self, text, tag=None):
        if len(self.lg) >= 15:
            self.e(f"s_waitcnt lgkmcnt(14)"); self.lg = self.lg[-14:]
        self.e(text); self.lg.append(tag)
    def _cnt(self, q, tags):
        idx = -1
        for t in tags:
            for k in range(len(q) - 1, -1, -1):
                if q[k] == t:
                    idx = max(idx, k); break
        return None if idx < 0 else len(q) - 1 - idx
    def wait(self, vm=(), lg=()):
        if isinstance(vm, (str, tuple)) and not isinstance(vm, list) and vm != (): vm = [vm]
        if isinstance(lg, (str, tuple)) and not isinstance(lg, list) and lg != (): lg = [lg]
        parts = []
        n = self._cnt(self.vm, vm)
        if n is not None:
            parts.append(f"vmcnt({n})"); self.vm = self.vm[len(self.vm) - n:] if n else []
        n = self._cnt(self.lg, lg)
        if n is not None:
            parts.append(f"lgkmcnt({n})"); self.lg = self.lg[len(self.lg) - n:] if n else []
        if parts: self.e("s_waitcnt " + " ".join(parts))
    def wait_all(self, vm=True, lg=True):
        parts = []
        if vm: parts.append("vmcnt(0)"); self.vm = []
        if lg: parts.append("lgkmcnt(0)"); self.lg = []
        self.e("s_waitcnt " + " ".join(parts))
    def state(self): return (list(self.vm), list(self.lg))
    def set_state(self, st): self.vm = list(st[0]); self.lg = list(st[1])
    def text(self):
        out = []
        for i in self.ins:
            out.append(i.text if i.kind == "label" else "    " + i.text)
        return "\n".join(out)
```

```python
import sys, struct
from collections import deque
from asmlib import Asm

NAME = "parallel_sum__spectral_gfnet__glu_gated_bilinear__prompt"
KN = NAME + "_kernel"
def f2u(x): return struct.unpack("<I", struct.pack("<f", x))[0]
def fl(x): return hex(f2u(x))

WS_H, WS_U, WS_V, WS_ST = 0x000000, 0x800000, 0xA00000, 0xC00000
WS_FA, WS_FB, WS_FV = 0xD00000, 0xD20000, 0xD40000
WS_TS = 0xE00000
WS_SIZE = 0x1000000
SLOT = 16384; NSLOT = 9; SCR = NSLOT * SLOT
SCR_CS = (SCR + 8192, SCR + 10240); SCR_R = SCR + 12288
DFT_LDS = 3 * SLOT
SPIN_MAX = 4000

SX, SW, SD, SWR, SWI, SO, SWS, SDBG = 8, 12, 16, 20, 24, 28, 32, 36
def srd(b): return f"s[{b}:{b+3}]"
sWv, sI, sJ, sJQ, sXJ, sG1, sMT, sNT, sFT, sK1 = 40, 41, 42, 43, 44, 45, 46, 47, 48, 49
sW4K, sOFF, sT0, sT1, sT2, sHB, sUA, sUB, sCNT, sDB = 50, 51, 52, 53, 54, 55, 56, 57, 58, 59
sNON = 60
sSGN = 62
sT3 = 63
sKA = 64
sM0, sM1 = 84, 86
sTS = 88
sR1, sR2, sR3 = 90, 91, 92
sT4 = 93
sFI1, sFI2 = 94, 95
UORD = [0, 2, 4, 1, 3, 5, 6]
vLANE, vL16 = 1, 2
vOW, vOX, vAW, vAX = 4, 8, 12, 16
vCS = 20
vCF = 24
vNM = 32
vR2 = 34
vPA = 35
vPD = 36
vPA2 = 38
vZ = 39
vT = 40
vACC = 64
vX = 128
aWF, aACC, aTF, aTI, aE, aG, aSEL = 0, 48, 112, 136, 160, 184, 248
def v(i, n=1): return f"v{i}" if n == 1 else f"v[{i}:{i+n-1}]"
def a(i, n=1): return f"a{i}" if n == 1 else f"a[{i}:{i+n-1}]"
def s(i, n=1): return f"s{i}" if n == 1 else f"s[{i}:{i+n-1}]"

class Gen:
    def __init__(self, stop=None, stamps=False):
        self.A = Asm(); self.stop = stop; self.stamps = stamps
        self.bg = deque(); self.vq = deque(); self.step = -1
        self.freed = set(); self.seg = {}
        self.ool = []
        self.nstamp = 0
    def e(self, t): self.A.e(t)
    def stamp(self, idx):
        if not self.stamps: return
        A = self.A
        A.wait_all(vm=False, lg=True)
        self.e(f"s_memrealtime {s(sTS,2)}\ns_waitcnt lgkmcnt(0)")
        self.e(f"s_mov_b64 exec, 1\nv_mov_b32 {v(vZ)}, {s(sTS)}\ns_lshl_b32 {s(sT4)}, s2, 2\ns_add_u32 {s(sT4)}, {s(sT4)}, {s(sWv)}\ns_lshl_b32 {s(sT4)}, {s(sT4)}, 7\ns_add_u32 {s(sT4)}, {s(sT4)}, {WS_TS}")
        A.vmem(f"buffer_store_dword {v(vZ)}, off, {srd(SWS)}, {s(sT4)} offset:{4*idx}", 'stamp')
        self.e(f"s_mov_b64 exec, -1")
    def B(self, cost, fn, min_step=-1):
        if isinstance(fn, str):
            t = fn; fn = lambda: self.e(t)
        self.bg.append((cost, fn, min_step))
    def Bl(self, text, min_step=-1):
        for line in text.split("\n"):
            line = line.strip()
            if not line: continue
            cost = 2 if line.split()[0].replace("_e64", "") in ("v_cos_f32", "v_sin_f32", "v_rcp_f32", "v_sqrt_f32") else 1
            self.B(cost, line, min_step)
    def run_bg(self, budget):
        while self.bg and budget > 0:
            cost, fn, ms = self.bg[0]
            if ms > self.step or (cost > budget and cost <= 2): break
            self.bg.popleft(); fn(); budget -= cost
        return budget
    def drain_bg(self, vm_every=None):
        n = 0
        while self.bg:
            cost, fn, ms = self.bg.popleft(); fn(); n += cost
            if vm_every and n >= vm_every:
                n = 0; self.run_vq()
    def run_vq(self):
        if self.vq and self.vq[0][0]():
            self.vq.popleft()[1](); return True
        return False
    def lds_off(self, key, regs, n, addr):
        seg = addr >> 16
        cur = self.seg.get(key, 0)
        if seg != cur:
            d = (seg - cur) << 16
            for r in range(regs, regs + n):
                self.e(f"v_add_u32 {v(r)}, {d & 0xffffffff:#x}, {v(r)}")
            self.seg[key] = seg
        return addr & 0xffff
    def q_fill(self, slot, kind, idx, needs, front=False, ninstr=4):
        A = self.A
        def mk(i):
            def fn():
                if self.cur_fill != (kind, idx):
                    self.cur_fill = (kind, idx)
                    if kind == 'U':
                        self.e(f"s_lshr_b32 {s(sOFF)}, {s(sW4K)}, 1\ns_add_u32 m0, {s(sOFF)}, {SCR}")
                        self.e(f"s_lshl_b32 {s(sT4)}, {s(sFI2)}, 4\ns_add_u32 {s(sOFF)}, {s(sT4)}, {WS_U:#x}")
                    else:
                        self.e(f"s_add_u32 m0, {s(sW4K)}, {slot*SLOT}")
                    if kind == 'X': self.e(f"s_mov_b32 {s(sOFF)}, {idx*128}")
                    elif kind == 'W': self.e(f"s_add_u32 {s(sOFF)}, {s(sUA if idx < 8 else sUB)}, {(idx & 7)*64*3584}")
                    elif kind == 'D':
                        unit = UORD[idx >> 1]
                        self.e(f"s_add_u32 {s(sOFF)}, {s(sDB)}, {(unit*64 + (idx & 1)*32)*1024}")
                    elif kind == 'V':
                        b, fi = idx >> 1, idx & 1
                        self.e(f"s_xor_b32 {s(sOFF)}, {s(sT3)}, {b*32768}\ns_add_u32 {s(sOFF)}, {s(sOFF)}, {WS_V + fi*16384:#x}")
                if kind == 'V':
                    A.vmem(f"buffer_load_dwordx4 {v(vPA2)}, {srd(SWS)}, {s(sOFF)} offen offset:{i*1024} sc1 lds", (kind, idx))
                elif kind == 'U':
                    A.vmem(f"buffer_load_dwordx4 {v(vOW+i)}, {srd(SWS)}, {s(sOFF)} offen offset:{i*1024} sc1 lds", (kind, idx))
                else:
                    vo = {'X': vOX, 'W': vOW, 'D': vOX}[kind] + i
                    sr = {'X': SX, 'W': SW, 'D': SD}[kind]
                    A.vmem(f"buffer_load_dwordx4 {v(vo)}, {srd(sr)}, {s(sOFF)} offen offset:{i*1024} lds", (kind, idx))
                if i == ninstr - 1: self.issued.add((kind, idx))
            return fn
        ents = [((lambda: all(k in self.freed for k in needs)), mk(i)) for i in range(ninstr)]
        if front:
            for en in reversed(ents): self.vq.appendleft(en)
        else:
            self.vq.extend(ents)
        self.slot_of[(kind, idx)] = slot
    def need_issued(self, key):
        while key not in self.issued:
            assert self.run_vq(), ("fill blocked", key, self.step)
    def poll_issue(self, addr, base, tag, data=vPD):
        self.e(f"s_mov_b32 {s(sT0)}, {base:#x}")
        self.A.vmem(f"buffer_load_dwordx2 {v(data,2)}, {v(addr)}, {srd(SWS)}, {s(sT0)} offen sc1", tag)
    def poll_check(self, addr, base, tag, data=vPD, tag32=False):
        A = self.A
        A.wait(vm=tag)
        ok = A.label("L_ok"); sp = A.label("L_spin")
        cmp = (f"v_cmp_ne_u32 vcc, {s(sNON)}, {v(data+1)}" if tag32 else f"v_cmp_ne_u64 vcc, {s(sNON,2)}, {v(data,2)}")
        self.e(cmp)
        self.e(f"s_cbranch_vccnz {sp}")
        self.e(f"{ok}:")
        self.ool.append(f"""{sp}:
    s_mov_b32 {s(sCNT)}, 0
    s_mov_b32 {s(sT0)}, {base:#x}
{sp}_l:
    s_sleep 2
    buffer_load_dwordx2 {v(data,2)}, {v(addr)}, {srd(SWS)}, {s(sT0)} offen sc1
    s_add_u32 {s(sCNT)}, {s(sCNT)}, 1
    s_waitcnt vmcnt(0)
    {cmp}
    s_cmp_gt_u32 {s(sCNT)}, {SPIN_MAX}
    s_cbranch_scc1 {ok}
    s_cbranch_vccnz {sp}_l
    s_branch {ok}""")
    def flag_store(self, base, idx_sreg, after):
        A = self.A
        A.wait(vm=after)
        self.e(f"s_add_u32 {s(sT0)}, {s(idx_sreg)}, {base:#x}")
        self.e(f"v_mov_b32 {v(vT+22)}, {s(sNON)}\nv_mov_b32 {v(vT+23)}, {s(sNON+1)}\ns_mov_b64 exec, 1")
        A.vmem(f"buffer_store_dwordx2 {v(vT+22,2)}, off, {srd(SWS)}, {s(sT0)} sc1", 'flag')
        self.e("s_mov_b64 exec, -1")
    def gen_frag(self, base, stepr, offs, dsts, T=vT):
        for h in range(2):
            if 'scale' in dsts:
                self.B(1, lambda h=h: self.A.ds(f"ds_read_b128 {v(vCS,4)}, v0 offset:{offs[4*h]*4}", 'rb'))
            for e in range(4):
                o = offs[4*h + e]
                self.Bl(f"v_mov_b32 {v(T+e)}, {v(base)}" if o == 0 else f"v_fmamk_f32 {v(T+e)}, {v(stepr)}, {fl(float(o))}, {v(base)}")
            if 'c' in dsts:
                for e in range(4): self.Bl(f"v_cos_f32 {v(T+4+e)}, {v(T+e)}")
            if 's' in dsts:
                for e in range(4): self.Bl(f"v_sin_f32 {v(T+8+e)}, {v(T+e)}")
            elif 'ns' in dsts:
                for e in range(4): self.Bl(f"v_sin_f32_e64 {v(T+8+e)}, -{v(T+e)}")
            if 'scale' in dsts:
                sc = vCS
                self.B(1, lambda: self.A.wait(lg='rb'))
                for e in range(4): self.Bl(f"v_mul_f32 {v(T+4+e)}, {v(T+4+e)}, {v(sc+e)}\nv_mul_f32 {v(T+8+e)}, {v(T+8+e)}, {v(sc+e)}")
            for k in range(2):
                if 'c' in dsts: self.Bl(f"v_cvt_pk_bf16_f32 {v(T+12+k)}, {v(T+4+2*k)}, {v(T+5+2*k)}")
                self.Bl(f"v_cvt_pk_bf16_f32 {v(T+14+k)}, {v(T+8+2*k)}, {v(T+9+2*k)}")
            if 'post' in dsts: dsts['post'](h, T+12, T+14, T+16)
            for k in range(2):
                if 'c' in dsts: self.Bl(f"v_accvgpr_write_b32 {a(dsts['c']+2*h+k)}, {v(T+12+k)}")
                if 's' in dsts:
                    self.Bl(f"v_accvgpr_write_b32 {a(dsts['s']+2*h+k)}, {v(T+14+k)}")
                    if 'ns' in dsts:
                        self.Bl(f"v_xor_b32 {v(T+16+k)}, {s(sSGN)}, {v(T+14+k)}\nv_accvgpr_write_b32 {a(dsts['ns']+2*h+k)}, {v(T+16+k)}")
                elif 'ns' in dsts:
                    self.Bl(f"v_accvgpr_write_b32 {a(dsts['ns']+2*h+k)}, {v(T+14+k)}")
    def bg_t2_consts(self):
        b, st = vT+20, vT+21
        self.Bl(f"""v_and_b32 {v(st)}, 15, {v(vLANE)}
            s_lshl_b32 {s(sT1)}, {s(sWv)}, 4
            v_add_u32 {v(st)}, {s(sT1)}, {v(st)}
            v_cvt_f32_u32 {v(st)}, {v(st)}
            v_mul_f32 {v(st)}, {fl(1/64)}, {v(st)}
            v_lshrrev_b32 {v(b)}, 4, {v(vLANE)}
            v_lshlrev_b32 {v(b)}, 3, {v(b)}
            v_cvt_f32_u32 {v(b)}, {v(b)}
            v_mul_f32 {v(b)}, {v(b)}, {v(st)}""")
        for ks in range(2):
            self.gen_frag(b, st, [32*ks + e for e in range(8)], dict(c=aTF+4*ks, s=aTF+8+4*ks, ns=aTF+16+4*ks))
        self.Bl(f"""v_cvt_f32_u32 {v(vT)}, {s(sK1)}
            v_mul_f32 {v(vT)}, {fl(1/32)}, {v(vT)}
            v_fmac_f32 {v(b)}, {v(vT)}, {v(st)}""")
        for ks in range(2):
            self.gen_frag(b, st, [32*ks + e for e in range(8)], dict(c=aTI+4*ks, s=aTI+8+4*ks, ns=aTI+16+4*ks))
    KOFF = [0, 1, 2, 3, 8, 9, 10, 11]
    def bg_e_consts(self):
        b, st = vT+20, vT+21
        self.Bl(f"""v_and_b32 {v(st)}, 31, {v(vLANE)}
            v_cvt_f32_u32 {v(st)}, {v(st)}
            v_mul_f32 {v(st)}, {fl(1/32)}, {v(st)}
            v_lshrrev_b32 {v(b)}, 5, {v(vLANE)}
            v_lshlrev_b32 {v(b)}, 2, {v(b)}
            v_cvt_f32_u32 {v(b)}, {v(b)}
            v_mul_f32 {v(b)}, {v(b)}, {v(st)}""")
        for ks in range(2):
            self.gen_frag(b, st, [16*ks + o for o in self.KOFF], dict(c=aE+4*ks, s=aE+8+4*ks, ns=aE+16+4*ks))
    def gidx(self, fi, p, t, aa): return aG + 4*(((fi*2 + p)*2 + t)*2 + aa)
    def bg_g_consts(self):
        b, st = vT+20, vT+21
        sg_r, sg_i = vT+18, vT+19
        self.Bl(f"""v_and_b32 {v(vT)}, 1, {v(vLANE)}
            v_cmp_eq_u32 {s(sM0,2)}, 1, {v(vT)}
            v_bfe_u32 {v(vT+1)}, {v(vLANE)}, 1, 1
            v_mul_lo_u32 {v(sg_r)}, {v(vT+1)}, {s(sSGN)}
            v_xor_b32 {v(vT+1)}, {v(vT+1)}, {v(vT)}
            v_mul_lo_u32 {v(sg_i)}, {v(vT+1)}, {s(sSGN)}""")
        self.B(3, f"""s_cmp_eq_u32 {s(sWv)}, 0
            s_cselect_b32 {s(sM1)}, -1, 0
            s_mov_b32 {s(sM1+1)}, 0""")
        for aa in range(2):
            self.Bl(f"""s_and_b32 {s(sT1)}, {s(sWv)}, 1
                s_xor_b32 {s(sT1)}, {s(sT1)}, {aa}
                s_lshl_b32 {s(sT1)}, {s(sT1)}, 5
                s_lshl_b32 {s(sT2)}, {s(sNT)}, 6
                s_add_u32 {s(sT1)}, {s(sT1)}, {s(sT2)}
                v_and_b32 {v(st)}, 31, {v(vLANE)}
                v_add_u32 {v(st)}, {s(sT1)}, {v(st)}
                v_cvt_f32_u32 {v(st)}, {v(st)}
                v_mul_f32 {v(st)}, {fl(1/512)}, {v(st)}
                s_lshl_b32 {s(sT1)}, {s(sWv)}, 5
                v_lshrrev_b32 {v(b)}, 5, {v(vLANE)}
                v_lshl_add_u32 {v(b)}, {v(b)}, 2, {s(sT1)}
                v_cvt_f32_u32 {v(b)}, {v(b)}
                v_mul_f32 {v(b)}, {v(b)}, {v(st)}""")
            for t in range(2):
                def post(h, rc, rs, tmp, t=t, aa=aa):
                    for k in range(2):
                        self.Bl(f"""v_cndmask_b32 {v(tmp)}, {v(rc+k)}, {v(rs+k)}, {s(sM0,2)}
                            v_cndmask_b32 {v(tmp+1)}, {v(rs+k)}, {v(rc+k)}, {s(sM0,2)}
                            v_xor_b32 {v(tmp)}, {v(sg_r)}, {v(tmp)}
                            v_xor_b32 {v(tmp+1)}, {v(sg_i)}, {v(tmp+1)}
                            v_accvgpr_write_b32 {a(self.gidx(1,0,t,aa)+2*h+k)}, {v(tmp)}
                            v_accvgpr_write_b32 {a(self.gidx(1,1,t,aa)+2*h+k)}, {v(tmp+1)}""")
                    if t == 0 and h == 0:
                        self.Bl(f"""v_and_b32 {v(tmp)}, 1, {v(vLANE)}
                            v_lshlrev_b32 {v(tmp)}, 15, {v(tmp)}
                            v_or_b32 {v(tmp)}, 0x3f00, {v(tmp)}
                            v_and_b32 {v(tmp+1)}, 0xffff0000, {v(rc)}
                            v_or_b32 {v(tmp)}, {v(tmp)}, {v(tmp+1)}
                            v_cndmask_b32 {v(rc)}, {v(rc)}, {v(tmp)}, {s(sM1,2)}
                            v_and_b32 {v(tmp+1)}, 0xffff0000, {v(rs)}
                            v_cndmask_b32 {v(rs)}, {v(rs)}, {v(tmp+1)}, {s(sM1,2)}""")
                self.gen_frag(b, st, [16*t + o for o in self.KOFF],
                              dict(c=self.gidx(0,0,t,aa), ns=self.gidx(0,1,t,aa), post=post))
    def prologue(self):
        A = self.A; e = self.e
        e(f"""s_cmp_ge_u32 s2, 256
            s_cbranch_scc1 L_end
            s_load_dwordx16 {s(sKA,16)}, s[0:1], 0
            s_load_dwordx4 {s(sKA+16,4)}, s[0:1], 64
            s_memrealtime {s(sNON,2)}
            v_lshrrev_b32 v3, 6, v0
            v_and_b32 {v(vLANE)}, 63, v0
            v_readfirstlane_b32 {s(sWv)}, v3
            v_lshlrev_b32 {v(vL16)}, 4, {v(vLANE)}
            s_and_b32 {s(sT0)}, s2, 7
            s_lshr_b32 {s(sT1)}, s2, 3
            s_lshr_b32 {s(sXJ)}, {s(sT0)}, 1
            s_and_b32 {s(sI)}, {s(sT0)}, 1
            s_lshl_b32 {s(sI)}, {s(sI)}, 3
            s_and_b32 {s(sFT)}, {s(sT1)}, 7
            s_add_u32 {s(sI)}, {s(sI)}, {s(sFT)}
            s_lshr_b32 {s(sJQ)}, {s(sT1)}, 3
            s_lshl_b32 {s(sJ)}, {s(sXJ)}, 2
            s_add_u32 {s(sJ)}, {s(sJ)}, {s(sJQ)}
            s_lshl_b32 {s(sG1)}, {s(sI)}, 2
            s_add_u32 {s(sG1)}, {s(sG1)}, {s(sWv)}
            s_lshl_b32 {s(sT2)}, {s(sT0)}, 2
            s_add_u32 {s(sK1)}, {s(sT2)}, {s(sJQ)}
            s_and_b32 {s(sMT)}, {s(sT1)}, 3
            s_add_u32 {s(sMT)}, {s(sMT)}, {s(sT2)}
            s_lshr_b32 {s(sNT)}, {s(sT1)}, 2
            s_lshl_b32 {s(sW4K)}, {s(sWv)}, 12
            s_mul_i32 {s(sUA)}, {s(sXJ)}, 7
            s_add_u32 {s(sT2)}, {s(sUA)}, 6
            s_lshl_b32 {s(sT0)}, {s(sJQ)}, 1
            s_add_u32 {s(sUA)}, {s(sUA)}, {s(sT0)}
            s_add_u32 {s(sUB)}, {s(sUA)}, 1
            s_min_u32 {s(sUB)}, {s(sUB)}, {s(sT2)}
            s_lshl_b32 {s(sUA)}, {s(sUA)}, 7
            s_lshl_b32 {s(sUB)}, {s(sUB)}, 7
            s_mov_b32 {s(sSGN)}, 0x80008000
            s_lshl_b32 {s(sFI1)}, {s(sI)}, 4
            s_add_u32 {s(sFI1)}, {s(sFI1)}, {s(sJ)}
            s_lshl_b32 {s(sFI1)}, {s(sFI1)}, 2
            s_add_u32 {s(sFI1)}, {s(sFI1)}, {s(sWv)}
            s_lshl_b32 {s(sFI1)}, {s(sFI1)}, 7
            s_lshl_b32 {s(sFI2)}, {s(sFT)}, 5
            s_add_u32 {s(sFI2)}, {s(sFI2)}, {s(sK1)}
            s_lshl_b32 {s(sFI2)}, {s(sFI2)}, 2
            s_add_u32 {s(sFI2)}, {s(sFI2)}, {s(sWv)}
            s_lshl_b32 {s(sFI2)}, {s(sFI2)}, 7""")
        e(f"""v_lshrrev_b32 v3, 5, {v(vLANE)}
            s_lshl_b32 {s(sT0)}, {s(sJ)}, 17
            s_lshl_b32 {s(sT1)}, {s(sG1)}, 10
            s_add_u32 {s(sT0)}, {s(sT0)}, {s(sT1)}
            v_lshlrev_b32 {v(vPA)}, 16, v3
            v_and_b32 {v(vT)}, 0x1f0, {v(vL16)}
            v_add3_u32 {v(vPA)}, {v(vPA)}, {v(vT)}, {s(sT0)}""")
        e(f"""v_lshrrev_b32 {v(vT)}, 3, {v(vLANE)}
            v_lshlrev_b32 {v(vT)}, 16, {v(vT)}
            v_add_u32 {v(vT)}, {s(sT1)}, {v(vT)}
            v_lshrrev_b32 {v(vT+1)}, 4, {v(vLANE)}
            v_xor_b32 {v(vT+1)}, {v(vT+1)}, {v(vLANE)}
            v_and_b32 {v(vT+1)}, 7, {v(vT+1)}
            v_lshlrev_b32 {v(vT+1)}, 4, {v(vT+1)}""")
        for n in range(4):
            e(f"v_xor_b32 {v(vT+2)}, {64*(n&1)}, {v(vT+1)}\nv_add_u32 {v(vOX+n)}, {v(vT)}, {v(vT+2)}")
            if n: e(f"v_add_u32 {v(vOX+n)}, {n*(8*65536-1024):#x}, {v(vOX+n)}")
        e("s_waitcnt lgkmcnt(0)")
        def mk(b, ka, size):
            e(f"s_mov_b32 {s(b)}, {s(sKA+ka)}\ns_mov_b32 {s(b+1)}, {s(sKA+ka+1)}\ns_mov_b32 {s(b+2)}, {size:#x}\ns_mov_b32 {s(b+3)}, 0x20000")
        mk(SDBG, 16, 256)
        e(f"""s_or_b32 {s(sNON)}, {s(sNON)}, 1
            s_or_b32 {s(sT0)}, s2, {s(sWv)}
            s_cmp_lg_u32 {s(sT0)}, 0
            s_cbranch_scc1 L_nononce
            v_mov_b32 {v(vT+2)}, {s(sNON)}
            v_mov_b32 {v(vT+3)}, {s(sNON+1)}
            s_mov_b64 exec, 1
            buffer_store_dwordx2 {v(vT+2,2)}, off, {srd(SDBG)}, 0 sc1
            s_mov_b64 exec, -1
            L_nononce:""")
        mk(SX, 0, 2048*1024)
        A.vmem(f"buffer_load_dwordx4 {v(vX+120,4)}, {v(vPA)}, {srd(SX)}, 0 offen", 'row')
        A.vmem(f"buffer_load_dwordx4 {v(vX+124,4)}, {v(vPA)}, {srd(SX)}, 0 offen offset:512", 'row')
        e(f"""s_cmp_lt_u32 {s(sWv)}, 2
            s_cselect_b32 {s(SW)}, {s(sKA+8)}, {s(sKA+10)}
            s_cselect_b32 {s(SW+1)}, {s(sKA+9)}, {s(sKA+11)}
            s_mov_b32 {s(SW+2)}, {512*3584:#x}
            s_mov_b32 {s(SW+3)}, 0x20000""")
        mk(SD, 12, 1792*1024); mk(SWR, 2, 2048*514); mk(SWI, 4, 2048*514); mk(SO, 14, 2048*1024); mk(SWS, 18, WS_SIZE)
        e(f"""s_and_b32 {s(sT0)}, {s(sWv)}, 1
            s_lshl_b32 {s(sT0)}, {s(sT0)}, 5
            v_lshrrev_b32 {v(vT)}, 3, {v(vLANE)}
            v_add_u32 {v(vT)}, {s(sT0)}, {v(vT)}
            v_mul_u32_u24 {v(vT)}, 3584, {v(vT)}
            v_bfe_u32 {v(vT+1)}, {v(vLANE)}, 4, 1
            v_lshlrev_b32 {v(vT+1)}, 6, {v(vT+1)}
            v_and_b32 {v(vT+2)}, 0x70, {v(vL16)}
            v_xor_b32 {v(vT+1)}, {v(vT+1)}, {v(vT+2)}
            s_lshr_b32 {s(sT0)}, {s(sWv)}, 1
            s_lshl_b32 {s(sT0)}, {s(sT0)}, 5
            v_xor_b32 {v(vT+1)}, {s(sT0)}, {v(vT+1)}
            v_add_u32 {v(vOW)}, {v(vT)}, {v(vT+1)}""")
        for n in range(1, 4):
            e(f"v_add_u32 {v(vOW+n)}, {n*(8*3584-1024):#x}, {v(vOW)}")
    def bg_addr_p1(self):
        self.Bl(f"""v_bfe_u32 {v(vT)}, {v(vLANE)}, 4, 1
            v_lshlrev_b32 {v(vT+1)}, 13, {v(vT)}
            v_lshrrev_b32 {v(vT+2)}, 5, {v(vLANE)}
            v_lshl_add_u32 {v(vT+1)}, {v(vT+2)}, 10, {v(vT+1)}
            v_bfe_u32 {v(vT+2)}, {v(vLANE)}, 2, 2
            v_lshl_add_u32 {v(vT+1)}, {v(vT+2)}, 7, {v(vT+1)}
            v_and_b32 {v(vT+3)}, 3, {v(vLANE)}
            v_lshl_add_u32 {v(vT+1)}, {v(vT+3)}, 3, {v(vT+1)}
            v_and_b32 {v(vT+2)}, 2, {v(vT+2)}
            v_xor_b32 {v(vT+2)}, {v(vT+2)}, {v(vT)}
            v_xor_b32 {v(vT+2)}, {s(sWv)}, {v(vT+2)}""")
        for q in range(4):
            self.Bl(f"v_xor_b32 {v(vT+3)}, {q}, {v(vT+2)}\nv_lshl_add_u32 {v(vAW+q)}, {v(vT+3)}, 5, {v(vT+1)}")
        self.Bl(f"""v_and_b32 {v(vT)}, 31, {v(vLANE)}
            v_lshlrev_b32 {v(vT+1)}, 7, {v(vT)}
            v_add_u32 {v(vT+1)}, {s(sW4K)}, {v(vT+1)}
            v_bfe_u32 {v(vT+2)}, {v(vLANE)}, 1, 3
            v_lshrrev_b32 {v(vT+3)}, 5, {v(vLANE)}
            v_xor_b32 {v(vT+2)}, {v(vT+2)}, {v(vT+3)}""")
        for u in range(4):
            self.Bl(f"v_xor_b32 {v(vT+3)}, {2*u}, {v(vT+2)}\nv_lshl_add_u32 {v(vAX+u)}, {v(vT+3)}, 4, {v(vT+1)}")
        self.Bl(f"""v_lshrrev_b32 {v(vT)}, 2, {v(vLANE)}
            v_lshrrev_b32 {v(vT+1)}, 4, {v(vLANE)}
            v_xor_b32 {v(vT)}, {v(vT)}, {v(vT+1)}
            v_and_b32 {v(vT)}, 1, {v(vT)}
            v_subrev_u32 {v(vT)}, 1, {v(vT)}
            v_and_b32 {v(vT)}, 0x3f803f80, {v(vT)}""")
        for k in range(4): self.Bl(f"v_accvgpr_write_b32 {a(aSEL+k)}, {v(vT)}")
    def reduce32(self, r, tmp):
        for ctl in ("quad_perm:[1,0,3,2]", "quad_perm:[2,3,0,1]", "row_half_mirror", "row_mirror"):
            self.Bl(f"v_add_f32_dpp {v(r)}, {v(r)}, {v(r)} {ctl} row_mask:0xf bank_mask:0xf")
        self.Bl(f"v_mov_b32 {v(tmp)}, {v(r)}\nv_permlane16_swap_b32 {v(r)}, {v(tmp)}\nv_add_f32 {v(r)}, {v(r)}, {v(tmp)}")
    def bg_stats(self):
        A = self.A
        U = vX + 96; R = vX + 120; acc = vX + 112; tmp = vX + 113; mean = vX + 114
        self.B(1, lambda: A.wait(vm='row'))
        for k in range(8):
            self.Bl(f"v_lshlrev_b32 {v(U+2*k)}, 16, {v(R+k)}\nv_and_b32 {v(U+2*k+1)}, 0xffff0000, {v(R+k)}")
        self.Bl(f"v_add_f32 {v(acc)}, {v(U)}, {v(U+1)}\nv_add_f32 {v(tmp)}, {v(U+2)}, {v(U+3)}")
        for k in range(4, 16, 2):
            self.Bl(f"v_add_f32 {v(acc)}, {v(acc)}, {v(U+k)}\nv_add_f32 {v(tmp)}, {v(tmp)}, {v(U+k+1)}")
        self.Bl(f"v_add_f32 {v(acc)}, {v(acc)}, {v(tmp)}")
        self.reduce32(acc, tmp)
        self.Bl(f"v_mul_f32 {v(mean)}, {fl(-1/512)}, {v(acc)}")
        for k in range(16): self.Bl(f"v_add_f32 {v(U+k)}, {v(U+k)}, {v(mean)}")
        self.Bl(f"v_mul_f32 {v(acc)}, {v(U)}, {v(U)}\nv_mul_f32 {v(tmp)}, {v(U+1)}, {v(U+1)}")
        for k in range(2, 16, 2):
            self.Bl(f"v_fmac_f32 {v(acc)}, {v(U+k)}, {v(U+k)}\nv_fmac_f32 {v(tmp)}, {v(U+k+1)}, {v(U+k+1)}")
        self.Bl(f"v_add_f32 {v(acc)}, {v(acc)}, {v(tmp)}")
        self.reduce32(acc, tmp)
        self.Bl(f"""v_mul_f32 {v(acc)}, {fl(1/512)}, {v(acc)}
            v_cvt_pk_bf16_f32 {v(acc)}, {v(acc)}, {v(acc)}
            v_lshlrev_b32 {v(acc)}, 16, {v(acc)}
            v_add_f32 {v(acc)}, {fl(1e-5)}, {v(acc)}
            v_cvt_pk_bf16_f32 {v(acc)}, {v(acc)}, {v(acc)}
            v_lshlrev_b32 {v(acc)}, 16, {v(acc)}
            v_sqrt_f32 {v(acc)}, {v(acc)}
            v_cvt_pk_bf16_f32 {v(vNM)}, {v(mean)}, {v(acc)}""")
    def nonce_issue(self):
        self.A.vmem(f"buffer_load_dwordx2 {v(vPD,2)}, off, {srd(SDBG)}, 0 sc1", 'nonce')
    def nonce_check_publish(self):
        A = self.A; e = self.e
        A.wait(vm='nonce')
        e(f"v_readfirstlane_b32 {s(sNON)}, {v(vPD)}\nv_readfirstlane_b32 {s(sNON+1)}, {v(vPD+1)}")
        ok = A.label("L_ok"); sp = A.label("L_spin")
        e(f"s_cmp_eq_u32 {s(sNON)}, 0\ns_cbranch_scc1 {sp}\n{ok}:")
        self.ool.append(f"""{sp}:
    s_mov_b32 {s(sCNT)}, 0
{sp}_l:
    s_sleep 2
    buffer_load_dwordx2 {v(vPD,2)}, off, {srd(SDBG)}, 0 sc1
    s_add_u32 {s(sCNT)}, {s(sCNT)}, 1
    s_waitcnt vmcnt(0)
    v_readfirstlane_b32 {s(sNON)}, {v(vPD)}
    v_readfirstlane_b32 {s(sNON+1)}, {v(vPD+1)}
    s_cmp_gt_u32 {s(sCNT)}, {SPIN_MAX}
    s_cbranch_scc1 {ok}
    s_cmp_eq_u32 {s(sNON)}, 0
    s_cbranch_scc1 {sp}_l
    s_branch {ok}""")
        e(f"""s_lshl_b32 {s(sT0)}, {s(sG1)}, 8
            s_lshl_b32 {s(sT4)}, {s(sJ)}, 4
            s_add_u32 {s(sT0)}, {s(sT0)}, {s(sT4)}
            s_add_u32 {s(sT0)}, {s(sT0)}, {WS_ST:#x}
            v_lshrrev_b32 {v(vPA)}, 5, {v(vLANE)}
            v_lshlrev_b32 {v(vPA)}, 3, {v(vPA)}
            v_mov_b32 {v(vNM+1)}, {s(sNON)}
            s_mov_b32 exec_lo, 1
            s_mov_b32 exec_hi, 1""")
        A.vmem(f"buffer_store_dwordx2 {v(vNM,2)}, {v(vPA)}, {srd(SWS)}, {s(sT0)} offen sc1", 'stpub')
        e(f"""s_mov_b64 exec, -1
            s_lshl_b32 {s(sT0)}, {s(sG1)}, 8
            v_and_b32 {v(vPA)}, 31, {v(vLANE)}
            v_lshl_add_u32 {v(vPA)}, {v(vPA)}, 3, {s(sT0)}""")
    def bg_stats_consume(self, ms_issue, ms_check):
        self.B(2, lambda: self.poll_issue(vPA, WS_ST, 'stpoll'), ms_issue)
        self.B(3, lambda: self.poll_check(vPA, WS_ST, 'stpoll', tag32=True), ms_check)
        self.Bl(f"""v_and_b32 {v(vR2)}, 0xffff0000, {v(vPD)}
            v_rcp_f32 {v(vZ)}, {v(vR2)}
            v_and_b32 {v(vNM+1)}, 0xffff, {v(vPD)}
            v_cmp_gt_u32 vcc, 32, {v(vLANE)}
            v_mul_f32 {v(vR2)}, {v(vZ)}, {v(vZ)}
            v_cndmask_b32 {v(vNM+1)}, 0, {v(vNM+1)}, vcc
            v_lshl_or_b32 {v(vNM)}, {v(vNM+1)}, 16, {v(vNM+1)}""")
    def cs_write(self, p):
        T = vCF
        self.e(f"""v_cvt_pk_bf16_f32 {v(T)}, {v(vCS)}, {v(vCS)}
            v_lshlrev_b32 {v(T)}, 16, {v(T)}
            v_sub_f32 {v(T+1)}, {v(vCS)}, {v(T)}
            v_cvt_pk_bf16_f32 {v(T+2)}, {v(vCS)}, {v(T+1)}
            v_and_b32 {v(T)}, 0xffff0000, {v(T+2)}
            v_sub_f32 {v(T+1)}, {v(T+1)}, {v(T)}
            v_cvt_pk_bf16_f32 {v(T+3)}, {v(T+1)}, 0
            s_lshl_b32 {s(sT4)}, {s(sWv)}, 9
            s_add_u32 {s(sT4)}, {s(sT4)}, {SCR_CS[p]}
            v_lshl_add_u32 v0, {v(vLANE)}, 3, {s(sT4)}""")
        self.A.ds(f"ds_write_b64 v0, {v(T+2,2)}", 'csw')
    def cs_read(self):
        for q in range(4):
            if q: self.e(f"v_xor_b32 v3, {q*512}, v0")
            self.A.ds(f"ds_read_b64 {v(vCF+2*q,2)}, {'v3' if q else 'v0'}", 'csr')
    def corr_mfma(self, q, acc):
        self.e(f"v_mfma_f32_32x32x8_bf16 {acc}, {v(vCF+2*q,2)}, {v(vNM,2)}, {acc}")
    def h_tile_items(self, q, from_agpr, sunit, tag):
        items = []
        T = vT
        def L(t, c=1): items.append((c, (lambda t=t: self.e(t))))
        for h in range(2):
            for e_ in range(4):
                e8 = 4*h + e_
                if from_agpr:
                    L(f"v_accvgpr_read_b32 {v(T+e_)}, {a(aACC+16*q+e8)}")
                    L(f"v_accvgpr_read_b32 {v(T+4+e_)}, {a(aACC+16*q+8+e8)}")
            for e_ in range(4):
                e8 = 4*h + e_
                g = T+e_ if from_agpr else vACC+16*q+e8
                L(f"v_mul_f32 {v(T+e_)}, {v(g)}, {v(vR2)}")
            for e_ in range(4):
                e8 = 4*h + e_
                u = T+4+e_ if from_agpr else vACC+16*q+8+e8
                L(f"v_mul_f32 {v(T+e_)}, {v(T+e_)}, {v(u)}")
            o = T + 8 + 4*(q & 1) + 2*h
            L(f"v_cvt_pk_bf16_f32 {v(o)}, {v(T)}, {v(T+1)}")
            L(f"v_cvt_pk_bf16_f32 {v(o+1)}, {v(T+2)}, {v(T+3)}")
        def st():
            if q == 0:
                self.e(f"s_lshl_b32 {s(sT2)}, {s(sunit)}, 5\ns_add_u32 {s(sT2)}, {s(sT2)}, {s(sHB)}")
            self.e(f"s_xor_b32 {s(sT1)}, {s(sT2)}, {q*1024}")
            self.A.vmem(f"buffer_store_dwordx4 {v(T+8+4*(q&1),4)}, {v(vL16)}, {srd(SWS)}, {s(sT1)} offen sc1", tag)
        items.append((3, st))
        return items
    def w_reads(self, T):
        c, u = T >> 2, T & 3
        base = aWF + 16*(T % 3)
        out = []
        if self.light and T < 32:
            for q in range(4):
                def fn(q=q):
                    off = self.lds_off('dft', vPA2, 1, DFT_LDS + ((T & 15)*4 + q)*1024)
                    self.A.ds(f"ds_read_b128 {a(base+4*q,4)}, {v(vPA2)} offset:{off}", ('wf', T))
                out.append(fn)
            return out
        for q in range(4):
            for half in range(2):
                def fn(q=q, half=half):
                    off = self.lds_off('aw', vAW, 4, self.slot_of[('W', c)]*SLOT + u*2048 + half*512)
                    self.A.ds(f"ds_read_b64_tr_b16 {a(base+4*q+2*half,2)}, {v(vAW+q)} offset:{off}", ('wf', T))
                out.append(fn)
        return out
    def x_reads(self, c):
        out = []
        for u in range(4):
            def fn(u=u):
                off = self.lds_off('ax', vAX, 4, self.slot_of[('X', c)]*SLOT)
                self.A.ds(f"ds_read_b128 {v(vX+16*c+4*u,4)}, {v(vAX+u)} offset:{off}", ('xf', c))
            out.append(fn)
        return out
    def dft_gen(self):
        b, st, sg, ad, ad2 = vT+20, vT+21, vT+22, vT+23, vT+19
        T = vT
        self.Bl(f"""v_bfe_u32 {v(T)}, {v(vLANE)}, 2, 1
            v_bfe_u32 {v(T+1)}, {v(vLANE)}, 3, 2
            v_and_b32 {v(T+2)}, 3, {v(vLANE)}
            v_lshl_add_u32 {v(T+2)}, {v(T+1)}, 2, {v(T+2)}
            v_lshl_add_u32 {v(T+2)}, {v(T)}, 4, {v(T+2)}
            s_lshl_b32 {s(sT1)}, {s(sXJ)}, 6
            s_lshr_b32 {s(sT2)}, {s(sWv)}, 1
            s_add_u32 {s(sT1)}, {s(sT1)}, {s(sT2)}
            v_lshl_add_u32 {v(T+2)}, {v(T+2)}, 1, {s(sT1)}
            v_cmp_eq_u32 vcc, 0, {v(T+2)}
            v_mov_b32 {v(T+3)}, 0x100
            v_cndmask_b32 {v(T+2)}, {v(T+2)}, {v(T+3)}, vcc
            v_cvt_f32_u32 {v(st)}, {v(T+2)}
            v_mul_f32 {v(st)}, {fl(1/512)}, {v(st)}
            s_and_b32 {s(sT1)}, {s(sWv)}, 1
            s_mul_i32 {s(sT1)}, {s(sT1)}, {fl(0.25)}
            v_lshrrev_b32 {v(b)}, 5, {v(vLANE)}
            v_lshlrev_b32 {v(b)}, 3, {v(b)}
            v_cvt_f32_u32 {v(b)}, {v(b)}
            v_fma_f32 {v(b)}, {v(b)}, {v(st)}, {s(sT1)}""")
        self.B(2, f"s_cmp_eq_u32 {s(sWv)}, 2\ns_cselect_b32 {s(sT1)}, 1, 0")
        self.Bl(f"""v_and_b32 {v(sg)}, 1, {v(vLANE)}
            v_xor_b32 {v(sg)}, {s(sT1)}, {v(sg)}
            v_mul_lo_u32 {v(sg)}, {v(sg)}, {s(sSGN)}
            s_lshl_b32 {s(sT1)}, {s(sWv)}, 10
            s_add_u32 {s(sT1)}, {s(sT1)}, {DFT_LDS}
            v_add_u32 {v(ad)}, {s(sT1)}, {v(vL16)}
            s_xor_b32 {s(sT1)}, {s(sWv)}, {s(sT2)}
            s_lshl_b32 {s(sT1)}, {s(sT1)}, 10
            s_add_u32 {s(sT1)}, {s(sT1)}, {DFT_LDS + 8*4096}
            v_add_u32 {v(ad2)}, {s(sT1)}, {v(vL16)}
            v_mov_b32 {v(vPA2)}, {v(vL16)}""")
        for t in range(8):
            for e in range(8):
                o = 16*t + e
                self.Bl(f"v_mov_b32 {v(T+e)}, {v(b)}" if o == 0 else f"v_fmamk_f32 {v(T+e)}, {v(st)}, {fl(float(o))}, {v(b)}")
            for e in range(8): self.Bl(f"v_cos_f32 {v(T+e)}, {v(T+e)}")
            P = T + 8 + 4*0; Q = T + 12
            self.B(1, lambda: self.A.wait(lg='dftw'))
            for k in range(4): self.Bl(f"v_cvt_pk_bf16_f32 {v(P+k)}, {v(T+2*k)}, {v(T+2*k+1)}")
            for k in range(4): self.Bl(f"v_xor_b32 {v(Q+k)}, {v(sg)}, {v(P+k)}")
            self.B(2, lambda t=t: self.A.ds(f"ds_write_b128 {v(ad)}, {v(P,4)} offset:{t*4096}", 'dftw'))
            self.B(2, lambda t=t: self.A.ds(f"ds_write_b128 {v(ad2)}, {v(Q,4)} offset:{t*4096}", 'dftw'))
    def bg_e1_consts(self):
        b, st = vT+20, vT+21
        self.Bl(f"""v_mul_f32 {v(vZ)}, {fl(2.0**-19)}, {v(vZ)}
            s_lshl_b32 {s(sT1)}, {s(sWv)}, 7
            s_add_u32 {s(sT1)}, {s(sT1)}, {SCR_R}
            v_and_b32 {v(st)}, 31, {v(vLANE)}
            v_lshl_add_u32 v3, {v(st)}, 2, {s(sT1)}""")
        self.B(1, lambda: self.A.ds(f"ds_write_b32 v3, {v(vZ)}", 'rbw'))
        self.Bl(f"""v_lshrrev_b32 {v(b)}, 5, {v(vLANE)}
            v_lshl_add_u32 v0, {v(b)}, 4, {s(sT1)}
            v_cvt_f32_u32 {v(st)}, {v(st)}
            v_mul_f32 {v(st)}, {fl(1/32)}, {v(st)}
            v_lshlrev_b32 {v(b)}, 8, {v(b)}
            v_add_u32 {v(b)}, {s(sG1)}, {v(b)}
            v_cvt_f32_u32 {v(b)}, {v(b)}
            v_mul_f32 {v(b)}, {fl(1/64)}, {v(b)}
            v_mul_f32 {v(b)}, {v(b)}, {v(st)}""")
        self.B(1, lambda: self.A.wait(lg='rbw'))
        for ks in range(2):
            self.gen_frag(b, st, [16*ks + o for o in self.KOFF], dict(c=aE+4*ks, s=aE+8+4*ks, ns=aE+16+4*ks, scale=True))
    def t1_stage2(self):
        e = self.e
        assert not self.bg, len(self.bg)
        def cvt(q): return [f"v_cvt_pk_bf16_f32 {v(vACC+16*q+k)}, {v(vACC+16*q+2*k)}, {v(vACC+16*q+2*k+1)}" for k in range(8)]
        for t in cvt(0) + cvt(1): e(t)
        later = deque(cvt(2) + cvt(3))
        for par in range(2):
            xr, xi = vACC + 32*par, vACC + 32*par + 16
            while par and later: e(later.popleft())
            seq = [(0, xr, 0), (1, xi, 0), (0, xi, 8), (1, xr, 16)]
            for ks in range(2):
                for o, x, cst in seq:
                    d = a(aG + 16*(2*par + o), 16)
                    first = (ks == 0 and cst == 0)
                    e(f"v_mfma_f32_32x32x16_bf16 {d}, {v(x+4*ks,4)}, {a(aE+cst+4*ks,4)}, {0 if first else d}")
                    for _ in range(3):
                        if later: e(later.popleft())
                    self.run_vq() if o else None
    def bg_u_store(self):
        A = self.A
        T = vT; UT = 5*SLOT
        self.Bl(f"""s_lshl_b32 {s(sT1)}, {s(sWv)}, 13
            s_add_u32 {s(sT1)}, {s(sT1)}, {UT}
            v_lshlrev_b32 v0, 7, {v(vLANE)}
            v_and_b32 v3, 0x70, {v(vL16)}
            v_add3_u32 v0, v0, v3, {s(sT1)}""", 34)
        for ch in range(8):
            p, k4 = ch >> 2, ch & 3
            o = T + 8 + 4*(ch & 1)
            for k in range(4):
                r = 4*k4 + k
                self.Bl(f"v_accvgpr_read_b32 {v(T+k)}, {a(aG+16*p+r)}\nv_accvgpr_read_b32 {v(T+4+k)}, {a(aG+32+16*p+r)}")
            self.B(1, lambda ch=ch: A.wait(lg=('utw', ch-2)))
            for k in range(4): self.Bl(f"v_cvt_pk_bf16_f32 {v(o+k)}, {v(T+k)}, {v(T+4+k)}")
            self.Bl(f"v_xor_b32 v3, {ch*16}, v0")
            self.B(2, lambda ch=ch, o=o: A.ds(f"ds_write_b128 v3, {v(o,4)}", ('utw', ch)))
        self.Bl(f"""v_lshrrev_b32 v3, 3, {v(vLANE)}
            v_xor_b32 v0, v3, {v(vLANE)}
            v_and_b32 v0, 7, v0
            v_lshlrev_b32 v0, 4, v0
            v_lshl_add_u32 v0, v3, 7, v0
            v_add_u32 v0, {s(sT1)}, v0
            v_lshlrev_b32 v3, 13, v3
            v_and_b32 {v(T)}, 0x70, {v(vL16)}
            v_add_u32 v3, v3, {v(T)}
            s_lshl_b32 {s(sT2)}, {s(sXJ)}, 19
            s_lshl_b32 {s(sT1)}, {s(sG1)}, 7
            s_add_u32 {s(sT2)}, {s(sT2)}, {s(sT1)}""")
        self.B(1, lambda: A.wait(lg=('utw', 7)))
        for n in range(8):
            self.B(1, lambda n=n: A.ds(f"ds_read_b128 {a(aG+4*n,4)}, v0 offset:{n*1024}", ('utr', n)))
        for n in range(8):
            def st(n=n):
                A.wait(lg=('utr', n))
                self.e(f"s_add_u32 {s(sT1)}, {s(sT2)}, {WS_U + n*65536:#x}")
                A.vmem(f"buffer_store_dwordx4 {a(aG+4*n,4)}, v3, {srd(SWS)}, {s(sT1)} offen sc1", 'hA')
            self.B(5, st)
        self.B(0, lambda: self.freed.add('UTdone'))
    def bg_passB(self, light):
        A = self.A
        self.B(0, lambda: self.need_issued(('X', 7)))
        self.Bl(f"""v_lshrrev_b32 {v(vT)}, 3, {v(vLANE)}
            v_lshlrev_b32 {v(vT)}, 10, {v(vT)}
            v_bfe_u32 {v(vT+1)}, {v(vLANE)}, 4, 1
            v_lshlrev_b32 {v(vT+1)}, 6, {v(vT+1)}
            v_and_b32 {v(vT+2)}, 0x70, {v(vL16)}
            v_xor_b32 {v(vT+1)}, {v(vT+1)}, {v(vT+2)}
            v_add_u32 {v(vOX)}, {v(vT)}, {v(vT+1)}
            v_add_u32 {v(vOX+1)}, {7*1024}, {v(vOX)}
            v_add_u32 {v(vOX+2)}, {14*1024}, {v(vOX)}
            v_add_u32 {v(vOX+3)}, {21*1024}, {v(vOX)}
            s_mul_i32 {s(sDB)}, {s(sWv)}, {448*1024}
            s_lshl_b32 {s(sT1)}, {s(sNT)}, 7
            s_add_u32 {s(sDB)}, {s(sDB)}, {s(sT1)}""")
        self.B(0, lambda: self.freed.add('OD'))
        if light:
            self.bg_u_store()
        else:
            for q in range(4):
                for c, fn in self.h_tile_items(q, False, sUA, 'hA'): self.B(c, fn, 37)
        for k in range(16): self.Bl(f"v_mov_b32 {v(vX+k)}, 0", 36)
        self.Bl(f"""v_lshrrev_b32 {v(vT)}, 4, {v(vLANE)}
            s_lshl_b32 {s(sT1)}, {s(sWv)}, 2
            v_add_u32 {v(vT)}, {s(sT1)}, {v(vT)}
            v_lshlrev_b32 {v(vT)}, 7, {v(vT)}
            v_add_u32 {v(vT)}, {s(sK1)}, {v(vT)}
            v_mul_u32_u24 {v(vT)}, 514, {v(vT)}
            v_and_b32 {v(vT+1)}, 15, {v(vLANE)}
            s_lshl_b32 {s(sT1)}, {s(sFT)}, 5
            v_add_u32 {v(vT+1)}, {s(sT1)}, {v(vT+1)}
            v_lshl_add_u32 {v(vT+3)}, {v(vT+1)}, 1, {v(vT)}
            v_cmp_eq_u32 vcc, 0, {v(vT+1)}
            v_add_u32 {v(vT+2)}, 512, {v(vT+3)}
            v_cndmask_b32 {v(vT+2)}, {v(vT+3)}, {v(vT+2)}, vcc
            s_mov_b32 {s(sR1)}, {32*514}
            s_mov_b32 {s(sR2)}, {64*514}
            s_mov_b32 {s(sR3)}, {96*514}""")
        for r in range(4):
            for ri in range(2):
                for nt in range(2):
                    so = "0" if r == 0 else s(sR1 + r - 1)
                    self.B(3, lambda r=r, ri=ri, nt=nt, so=so: A.vmem(
                        f"buffer_load_short_d16_hi {v(vX+(nt*4+r)*2+ri)}, {v(vT+2+nt)}, {srd(SWI if ri else SWR)}, {so} offen offset:{32*nt}", 'fw'))
        self.B(4, lambda: self.flag_store(WS_FA, sFI1, 'hA'), self.T_FLAGA)
        self.bg_e_consts()
        self.Bl(f"""v_and_b32 {v(vT)}, 15, {v(vLANE)}
            v_lshrrev_b32 {v(vT+1)}, 2, {v(vT)}
            v_and_b32 {v(vT)}, 3, {v(vT)}
            v_lshl_add_u32 {v(vT)}, {v(vT+1)}, 6, {v(vT)}
            s_lshr_b32 {s(sT1)}, {s(sFT)}, 1
            s_lshl_b32 {s(sT1)}, {s(sT1)}, 4
            s_add_u32 {s(sT1)}, {s(sT1)}, 12
            s_lshl_b32 {s(sT2)}, {s(sWv)}, 8
            s_add_u32 {s(sT1)}, {s(sT1)}, {s(sT2)}
            v_add_u32 {v(vT)}, {s(sT1)}, {v(vT)}
            v_lshlrev_b32 {v(vPA)}, 7, {v(vT)}""")
        self.B(2, lambda: self.poll_issue(vPA, WS_FA, 'upoll'), self.T_UPOLL)
        self.B(0, lambda: self.need_issued(('W', 15)), self.T_UPOLL)
        self.Bl(f"""v_lshrrev_b32 {v(vT)}, 3, {v(vLANE)}
            v_lshlrev_b32 {v(vT)}, 7, {v(vT)}
            v_bfe_u32 {v(vT+1)}, {v(vLANE)}, 4, 1
            v_lshlrev_b32 {v(vT+1)}, 5, {v(vT+1)}
            v_and_b32 {v(vT+2)}, 0x70, {v(vL16)}
            v_xor_b32 {v(vT+1)}, {v(vT+1)}, {v(vT+2)}
            v_add_u32 {v(vOW)}, {v(vT)}, {v(vT+1)}
            v_xor_b32 {v(vOW+1)}, 64, {v(vOW)}""")
        self.B(3, lambda: self.poll_check(vPA, WS_FA, 'upoll'), self.T_UCHK)
        self.B(0, lambda: self.q_fill(0, 'U', 0, [], front=True, ninstr=2))
        self.Bl(f"""s_lshr_b32 {s(sT1)}, {s(sMT)}, 1
            s_lshl_b32 {s(sT1)}, {s(sT1)}, 6
            s_lshl_b32 {s(sT2)}, {s(sWv)}, 4
            s_add_u32 {s(sT1)}, {s(sT1)}, {s(sT2)}
            s_and_b32 {s(sT2)}, {s(sMT)}, 1
            s_lshl_b32 {s(sT2)}, {s(sT2)}, 1
            s_add_u32 {s(sT1)}, {s(sT1)}, {s(sT2)}
            v_bfe_u32 {v(vT)}, {v(vLANE)}, 1, 2
            v_and_b32 {v(vT+1)}, 1, {v(vLANE)}
            v_add_u32 {v(vT+1)}, {s(sT1)}, {v(vT+1)}
            v_lshl_add_u32 {v(vT+2)}, {v(vT)}, 2, {v(vT+1)}
            v_lshlrev_b32 {v(vOW+2)}, 7, {v(vT+2)}
            v_min_u32 {v(vT)}, 2, {v(vT)}
            v_lshl_add_u32 {v(vT+2)}, {v(vT)}, 2, {v(vT+1)}
            v_lshlrev_b32 {v(vPA)}, 7, {v(vT+2)}""")
        self.B(2, lambda: self.poll_issue(vPA, WS_FA, 'hapoll'), self.T_HAPOLL)
    T_FLAGA, T_UPOLL, T_UCHK, T_HAPOLL = 48, 55, 59, 61
    def phase1(self, light):
        A = self.A; e = self.e
        self.light = light; self.slot_of = {}; self.freed = set(); self.seg = {}; self.issued = set(); self.cur_fill = None
        self.bg.clear(); self.vq.clear(); self.step = -1
        seq = []
        for c in range(8): seq += [('X', c), ('W', c)]
        seq += [('W', c) for c in range(8, 16)] + [('D', k) for k in range(14)] + [('V', k) for k in range(4)]
        def std_needs(n):
            kind = seq[n][0]
            needs = [seq[n-NSLOT]] if n >= NSLOT else []
            if kind == 'D': needs.append('OD')
            if kind == 'V': needs.append('VOK')
            if n >= NSLOT and seq[n-NSLOT] == ('W', 15): needs.append('T2')
            return needs
        if not light:
            for n, (kind, idx) in enumerate(seq): self.q_fill(n % NSLOT, kind, idx, std_needs(n))
        else:
            order = [('X',0,0,[]), ('X',1,1,[]), ('X',2,2,[]), ('W',8,7,[]), ('X',3,0,[('X',0)]), ('W',9,8,[]), ('X',4,1,[('X',1)]),
                     ('X',5,2,[('X',2)]), ('X',6,0,[('X',3)]), ('X',7,1,[('X',4)]),
                     ('W',10,0,[('X',6)]), ('W',11,1,[('X',7)]), ('W',12,2,[('X',5)]),
                     ('W',13,3,['DFT']), ('W',14,4,['DFT']), ('W',15,5,['UT'])]
            for kind, idx, slot, needs in order: self.q_fill(slot, kind, idx, needs)
            for n in range(24, len(seq)):
                self.q_fill(n % NSLOT, seq[n][0], seq[n][1], ['UT', 'OD'] if n == 24 else std_needs(n))
        for _ in range(10): self.run_vq()
        self.bg_addr_p1()
        self.Bl(f"s_mul_i32 {s(sHB)}, {s(sG1)}, {112*1024}\ns_lshl_b32 {s(sT1)}, {s(sWv)}, 10\ns_add_u32 {s(sHB)}, {s(sHB)}, {s(sT1)}")
        if light:
            self.dft_gen()
            self.B(1, self.nonce_issue)
            self.bg_stats()
            self.drain_bg(vm_every=40)
            self.bg_t2_consts()
            self.bg_stats_consume(17, 21)
            self.bg_e1_consts()
        else:
            self.bg_t2_consts()
            self.B(1, self.nonce_issue)
            self.bg_stats()
            self.drain_bg(vm_every=18)
            self.bg_stats_consume(26, 31)
        self.stamp(1)
        A.wait(vm=[('X', 0), ('W', 0)], lg='dftw')
        e("s_barrier")
        for fn in self.x_reads(0) + self.w_reads(0) + self.w_reads(1): fn()
        self.stamp(2)
        for T in range(64):
            self.step = T
            c, u, p, t = T >> 2, T & 3, T >> 5, T & 31
            dft = light and p == 0
            A.wait(lg=[('wf', T), ('xf', c)])
            if u == 0 and p == 0: self.freed.add(('X', c))
            fixed = deque()
            if T + 2 < 64: fixed.extend(self.w_reads(T + 2))
            if u == 3 and c + 1 < 8: fixed.extend(self.x_reads(c + 1))
            wb = aWF + 16*(T % 3)
            for q in range(4):
                xr = v(vX + 4*t, 4)
                acc = v(vACC+16*q, 16) if p == 0 else a(aACC+16*q, 16)
                if dft:
                    if t >= 16 and q >= 2: xr = v(vCF + 4*(t & 1), 4)
                    e(f"v_mfma_f32_32x32x16_bf16 {acc}, {xr}, {a(wb+4*q,4)}, {acc if t else 0}")
                else:
                    e(f"v_mfma_f32_32x32x16_bf16 {acc}, {a(wb+4*q,4)}, {xr}, {acc if t else 0}")
                budget = 6
                if q == 0 and u == 2:
                    tags = []
                    if c + 1 < 8: tags.append(('X', c + 1))
                    needbar = not (light and c + 1 < 8)
                    if needbar and c + 1 < 16: tags.append(('W', c + 1))
                    for tg in tags: self.need_issued(tg)
                    A.wait(vm=tags, lg=['csw'])
                    if needbar: e("s_barrier")
                    if c >= 1: self.freed.add(('W', c - 1))
                    if c == 8: self.freed.add('DFT')
                    if 'UTdone' in self.freed: self.freed.add('UT')
                    if c == 8 and not light: self.cs_read(); budget -= 4
                    budget -= 2
                if T == 32 and q == 2 and not light: self.cs_write(0); budget = 0
                if T == 5 and q == 1: self.nonce_check_publish(); budget = 0
                if dft and q == 0 and t >= 16 and u == 0:
                    for k in range(4): e(f"v_xor_b32 {v(vCF+4*(t&1)+k)}, {s(sSGN)}, {v(vX+4*t+k)}")
                    budget -= 4
                if dft and q == 3 and t >= 16 and u != 3:
                    for k in range(4): e(f"v_xor_b32 {v(vCF+4*((t+1)&1)+k)}, {s(sSGN)}, {v(vX+4*(t+1)+k)}")
                    budget -= 4
                nfix = -(-len(fixed) // (4 - q))
                for _ in range(nfix): fixed.popleft()(); budget -= 1
                if q & 1 and self.run_vq(): budget -= 1
                if not light and T == 36:
                    A.wait(lg='csr'); self.corr_mfma(q, v(vACC+16*q, 16)); budget += 5
                self.run_bg(budget)
            if not dft:
                e(f"v_mfma_f32_16x16x32_bf16 {v(vCS,4)}, {a(aSEL,4)}, {a(wb,4)}, {v(vCS,4) if t else 0}")
                self.run_bg(2)
            if T == 31:
                self.drain_bg()
                self.stamp(3)
                if light: self.t1_stage2()
                self.bg_passB(light)
        self.step = 64
        self.drain_bg()
        self.need_issued(('U', 0))
        self.stamp(4)
    HR = 14
    def hreg(self, n, b): return vX + 16 + 8*(n % self.HR) + 4*b
    def q_hload(self, n, needs):
        for b in range(2):
            def fn(b=b):
                unit = UORD[n >> 2]
                if self.cur_h != unit:
                    self.cur_h = unit
                    self.e(f"s_mov_b32 {s(sHB)}, {unit*4096}")
                self.A.vmem(f"buffer_load_dwordx4 {v(self.hreg(n,b),4)}, {v(vAX+b)}, {srd(SWS)}, {s(sHB)} offen offset:{(n&3)*1024} sc1", ('h', n))
                if b: self.issued.add(('h', n))
            self.hq.append(((lambda: all(k in self.freed for k in needs)), fn))
    def run_hq(self):
        if self.hq and self.hq[0][0]():
            self.hq.popleft()[1](); return True
        return False
    def run_mem(self):
        return self.run_hq() or self.run_vq()
    def t2(self):
        A = self.A; e = self.e
        MID = self.slot_of[('W', 15)]*SLOT
        R = vX + 112
        self.cs_write(1)
        e(f"""v_lshrrev_b32 {v(vT)}, 4, {v(vLANE)}
            v_bfe_u32 {v(vT+1)}, {v(vLANE)}, 2, 2
            v_lshlrev_b32 {v(vT+2)}, 10, {v(vT)}
            v_lshl_add_u32 {v(vT+2)}, {v(vT+1)}, 7, {v(vT+2)}
            v_and_b32 {v(vT+3)}, 3, {v(vLANE)}
            v_lshl_add_u32 {v(vT+2)}, {v(vT+3)}, 3, {v(vT+2)}
            v_add_u32 {v(vT+2)}, {SCR}, {v(vT+2)}
            v_lshrrev_b32 {v(vT+1)}, 1, {v(vT+1)}
            v_and_b32 {v(vT)}, 1, {v(vT)}
            v_lshl_or_b32 {v(vT+1)}, {v(vT)}, 1, {v(vT+1)}""")
        for o in range(4):
            e(f"v_xor_b32 {v(vT+3)}, {o}, {v(vT+1)}\nv_lshl_add_u32 {v(vAW+o)}, {v(vT+3)}, 5, {v(vT+2)}")
        A.wait(vm=('U', 0), lg='csw')
        e("s_barrier")
        self.freed.add(('W', 15))
        self.cs_read()
        def df(ks, p, nt): return aWF + 4*((ks*2 + p)*2 + nt)
        for ks in range(2):
            for p in range(2):
                for nt in range(2):
                    for half in range(2):
                        A.ds(f"ds_read_b64_tr_b16 {a(df(ks,p,nt)+2*half,2)}, {v(vAW+2*p+nt)} offset:{ks*4096+half*512}", ('t2d', ks))
        e(f"""s_lshl_b32 {s(sT1)}, {s(sMT)}, 1
            s_lshr_b32 {s(sT2)}, {s(sWv)}, 1
            s_add_u32 {s(sT1)}, {s(sT1)}, {s(sT2)}
            s_lshl_b32 {s(sT3)}, {s(sT1)}, 15
            s_add_u32 {s(sT3)}, {s(sT3)}, {s(sW4K)}
            s_mul_i32 {s(sT2)}, {s(sWv)}, {28*1024}
            s_mul_i32 {s(sT0)}, {s(sT1)}, {112*1024}
            s_add_u32 {s(sT0)}, {s(sT0)}, {s(sT2)}
            v_add_u32 {v(vAX)}, {s(sT0)}, {v(vL16)}
            s_xor_b32 {s(sT1)}, {s(sT1)}, 1
            s_mul_i32 {s(sT0)}, {s(sT1)}, {112*1024}
            s_add_u32 {s(sT0)}, {s(sT0)}, {s(sT2)}
            v_add_u32 {v(vAX+1)}, {s(sT0)}, {v(vL16)}""")
        A.wait(lg='csr')
        for q in range(4): self.corr_mfma(q, a(aACC+16*q, 16))
        items = deque()
        for q in range(4): items.extend(self.h_tile_items(q, True, sUB, 'hB'))
        def ar(nt, p): return R + 4*(nt*2 + p)
        for ks in range(2):
            A.wait(lg=('t2d', ks))
            for nt in range(2):
                for o, p, cst in ((0, 0, 0), (1, 1, 0), (0, 1, 8), (1, 0, 16)):
                    d = v(ar(nt, o), 4)
                    first = ks == 0 and cst == 0
                    e(f"v_mfma_f32_16x16x32_bf16 {d}, {a(aTF+cst+4*ks,4)}, {a(df(ks,p,nt),4)}, {0 if first else d}")
                    for _ in range(3):
                        if items: items.popleft()[1]()
        for _ in range(24):
            if items: items.popleft()[1]()
        e(f"""v_and_b32 v0, 15, {v(vLANE)}
            v_mul_u32_u24 v0, 272, v0
            v_lshrrev_b32 v3, 4, {v(vLANE)}
            v_lshl_add_u32 v0, v3, 3, v0
            s_lshl_b32 {s(sT0)}, {s(sWv)}, 5
            s_add_u32 {s(sT0)}, {s(sT0)}, {MID}
            v_add_u32 v0, {s(sT0)}, v0""")
        A.wait(vm='fw')
        P = vACC
        for nt in range(2):
            for r in range(4):
                wr, wi = vX + (nt*4+r)*2, vX + (nt*4+r)*2 + 1
                xr, xi = ar(nt, 0) + r, ar(nt, 1) + r
                e(f"v_mul_f32 {v(P+8*nt+r)}, {v(xr)}, {v(wr)}\nv_mul_f32 {v(P+8*nt+4+r)}, {v(xr)}, {v(wi)}")
            for r in range(4):
                wr, wi = vX + (nt*4+r)*2, vX + (nt*4+r)*2 + 1
                xr, xi = ar(nt, 0) + r, ar(nt, 1) + r
                e(f"v_fma_f32 {v(P+8*nt+r)}, -{v(xi)}, {v(wi)}, {v(P+8*nt+r)}\nv_fmac_f32 {v(P+8*nt+4+r)}, {v(xi)}, {v(wr)}")
            for p in range(2):
                o = P + 16 + 4*nt + 2*p
                e(f"v_cvt_pk_bf16_f32 {v(o)}, {v(P+8*nt+4*p)}, {v(P+8*nt+4*p+1)}\nv_cvt_pk_bf16_f32 {v(o+1)}, {v(P+8*nt+4*p+2)}, {v(P+8*nt+4*p+3)}")
                A.ds(f"ds_write_b64 v0, {v(o,2)} offset:{nt*16*272 + p*128}", 'midw')
        e(f"""v_bfe_u32 v0, {v(vLANE)}, 2, 2
            v_and_b32 {v(P)}, 3, {v(vLANE)}
            v_lshl_add_u32 v0, v0, 3, {v(P)}
            v_mul_u32_u24 v0, 272, v0
            v_lshl_add_u32 v0, v3, 4, v0
            v_add_u32 v0, {MID}, v0""")
        while items: items.popleft()[1]()
        self.hq = deque(); self.cur_h = None
        self.poll_check(vPA, WS_FA, 'hapoll')
        for n in range(28):
            needs = []
            if n >= 12: needs.append('HBOK')
            if n >= self.HR: needs.append(('hc', n - self.HR))
            if n in (12, 13): needs.append('T2')
            self.q_hload(n, needs)
        for _ in range(4): self.run_mem()
        A.wait(lg='midw')
        e("s_barrier")
        for ks in range(2):
            for p in range(2):
                for mt in range(2):
                    A.ds(f"ds_read_b128 {a(df(ks,p,mt),4)}, v0 offset:{mt*4*272 + p*128 + ks*64}", ('t2e', ks))
        e(f"""v_and_b32 {v(P)}, 15, {v(vLANE)}
            v_lshlrev_b32 {v(P)}, 15, {v(P)}
            v_lshl_add_u32 v3, v3, 4, {v(P)}
            s_lshl_b32 {s(sT0)}, {s(sWv)}, 19
            s_lshl_b32 {s(sT1)}, {s(sFT)}, 12
            s_add_u32 {s(sT0)}, {s(sT0)}, {s(sT1)}
            s_lshl_b32 {s(sT1)}, {s(sK1)}, 7
            s_add_u32 {s(sT0)}, {s(sT0)}, {s(sT1)}
            s_add_u32 {s(sT2)}, {s(sT0)}, {WS_V:#x}""")
        for _ in range(4): self.run_mem()
        for ks in range(2):
            A.wait(lg=('t2e', ks))
            for mt in range(2):
                for o, p, cst in ((0, 0, 0), (1, 1, 0), (0, 1, 16), (1, 0, 8)):
                    d = v(ar(mt, o), 4)
                    first = ks == 0 and cst == 0
                    e(f"v_mfma_f32_16x16x32_bf16 {d}, {a(df(ks,p,mt),4)}, {a(aTI+cst+4*ks,4)}, {0 if first else d}")
                self.run_mem()
        for _ in range(2): self.run_mem()
        for p in range(2):
            o = P + 24 + 4*p
            for mt in range(2):
                e(f"v_cvt_pk_bf16_f32 {v(o+2*mt)}, {v(ar(mt,p))}, {v(ar(mt,p)+1)}\nv_cvt_pk_bf16_f32 {v(o+2*mt+1)}, {v(ar(mt,p)+2)}, {v(ar(mt,p)+3)}")
            A.vmem(f"buffer_store_dwordx4 {v(o,4)}, v3, {srd(SWS)}, {s(sT2)} offen offset:{p*64} sc1", 'vst')
        self.flag_store(WS_FB, sFI1, 'hB')
        e("s_barrier")
        self.freed.add('T2')
        self.stamp(5)
    def gemm2(self):
        A = self.A; e = self.e
        e(f"""v_lshrrev_b32 {v(vT)}, 5, {v(vLANE)}
            v_bfe_u32 {v(vT+1)}, {v(vLANE)}, 2, 2
            v_lshlrev_b32 {v(vT+2)}, 9, {v(vT)}
            v_lshl_add_u32 {v(vT+2)}, {v(vT+1)}, 7, {v(vT+2)}
            v_and_b32 {v(vT+3)}, 3, {v(vLANE)}
            v_lshl_add_u32 {v(vT+2)}, {v(vT+3)}, 3, {v(vT+2)}
            v_add_u32 {v(vT+2)}, {s(sW4K)}, {v(vT+2)}
            v_and_b32 {v(vT+1)}, 2, {v(vT+1)}
            v_bfe_u32 {v(vT+3)}, {v(vLANE)}, 4, 1
            v_or_b32 {v(vT+1)}, {v(vT+1)}, {v(vT+3)}
            s_and_b32 {s(sT0)}, {s(sWv)}, 1
            s_lshl_b32 {s(sT0)}, {s(sT0)}, 1
            v_xor_b32 {v(vT+1)}, {s(sT0)}, {v(vT+1)}
            v_lshl_add_u32 {v(vAW)}, {v(vT+1)}, 5, {v(vT+2)}
            v_xor_b32 {v(vAW+1)}, 64, {v(vAW)}""")
        self.seg['ad'] = 0
        def d_reads(n):
            out = []
            base = aWF + 8*(n % 3)
            for aa in range(2):
                for half in range(2):
                    def fn(aa=aa, half=half):
                        if aa == 0 and half == 0 and (n & 1) == 0:
                            self.need_issued(('D', n >> 1)); A.wait(vm=('D', n >> 1))
                        off = self.lds_off('ad', vAW, 2, self.slot_of[('D', n >> 1)]*SLOT + (n & 1)*2048 + half*1024)
                        A.ds(f"ds_read_b64_tr_b16 {a(base+4*aa+2*half,2)}, {v(vAW+aa)} offset:{off}", ('df', n))
                    out.append(fn)
            return out
        def vfr(u, p, ks): return aTF + 16*(u & 1) + 4*(2*p + ks)
        def v_reads(u):
            out = []
            for ks in range(2):
                for p in range(2):
                    for half in range(2):
                        def fn(p=p, ks=ks, half=half):
                            if p == 0 and ks == 0 and half == 0:
                                self.need_issued(('V', u)); A.wait(vm=('V', u))
                            off = self.lds_off('ad', vAW, 2, self.slot_of[('V', u)]*SLOT + ks*2048 + half*1024)
                            A.ds(f"ds_read_b64_tr_b16 {a(vfr(u,p,ks)+2*half,2)}, {v(vAW+p)} offset:{off}", ('vf', u))
                        out.append(fn)
            return out
        for fn in d_reads(0) + d_reads(1): fn()
        self.step = 0
        self.B(4, lambda: self.flag_store(WS_FV, sFI2, 'vst'), 2)
        self.B(2, lambda: self.poll_issue(vOW+2, WS_FB, 'hbpoll'), 2)
        self.Bl(f"""v_lshrrev_b32 {v(vT)}, 3, {v(vLANE)}
            v_lshlrev_b32 {v(vT)}, 7, {v(vT)}
            v_bfe_u32 {v(vT+1)}, {v(vLANE)}, 4, 1
            v_xor_b32 {v(vT+1)}, {s(sWv)}, {v(vT+1)}
            v_and_b32 {v(vT+1)}, 1, {v(vT+1)}
            v_lshlrev_b32 {v(vT+1)}, 6, {v(vT+1)}
            v_and_b32 {v(vT+2)}, 0x70, {v(vL16)}
            v_xor_b32 {v(vT+1)}, {v(vT+1)}, {v(vT+2)}
            v_add_u32 {v(vPA2)}, {v(vT)}, {v(vT+1)}""")
        self.Bl(f"""v_lshrrev_b32 {v(vT)}, 5, {v(vLANE)}
            v_lshlrev_b32 {v(vT)}, 7, {v(vT)}
            v_and_b32 {v(vT+1)}, 31, {v(vLANE)}
            s_lshl_b32 {s(sT1)}, {s(sWv)}, 5
            v_add3_u32 {v(vT)}, {v(vT)}, {v(vT+1)}, {s(sT1)}
            s_lshr_b32 {s(sT1)}, {s(sMT)}, 3
            v_lshl_add_u32 {v(vT)}, {v(vT)}, 2, {s(sT1)}
            v_lshlrev_b32 {v(vPA)}, 7, {v(vT)}""")
        def hbok(): self.poll_check(vOW+2, WS_FB, 'hbpoll'); self.freed.add('HBOK')
        self.B(3, hbok, self.N_HBCHK)
        self.bg_g_consts()
        ev = {self.N_VPOLL: lambda: self.poll_issue(vPA, WS_FV, 'vpoll'),
              self.N_VCHK: lambda: (self.poll_check(vPA, WS_FV, 'vpoll'), self.freed.add('VOK'))}
        for n in range(28):
            self.step = n
            if n in ev: ev[n]()
            while ('h', n) not in self.issued:
                if not self.run_hq():
                    assert self.bg, ("h blocked", n)
                    self.bg.popleft()[1]()
            A.wait(vm=('h', n), lg=('df', n))
            if n >= 1: self.freed.add(('hc', n - 1))
            if n & 1: self.freed.add(('D', n >> 1))
            fixed = deque(d_reads(n + 2) if n + 2 < 28 else v_reads(n + 2 - 28))
            wb = aWF + 8*(n % 3)
            for q in range(4):
                aa, b = q & 1, q >> 1
                acc = a(aACC + 16*q, 16)
                e(f"v_mfma_f32_32x32x16_bf16 {acc}, {a(wb+4*aa,4)}, {v(self.hreg(n,b),4)}, {acc if n else 0}")
                budget = 6
                nfix = -(-len(fixed) // (4 - q))
                for _ in range(nfix): fixed.popleft()(); budget -= 1
                if q != 3 and self.run_mem(): budget -= 1
                self.run_bg(budget)
        self.drain_bg()
        self.stamp(6)
        XR = vX
        e(f"""v_and_b32 v0, 31, {v(vLANE)}
            v_lshlrev_b32 v0, 16, v0
            v_lshrrev_b32 v3, 5, {v(vLANE)}
            v_lshl_add_u32 {v(vPD)}, v3, 3, v0
            v_lshl_add_u32 {v(vPD+1)}, v3, 4, v0
            s_lshr_b32 {s(sT0)}, {s(sT3)}, 15
            s_lshl_b32 {s(sT0)}, {s(sT0)}, 10
            s_lshl_b32 {s(sT1)}, {s(sNT)}, 7
            s_add_u32 {s(sT0)}, {s(sT0)}, {s(sT1)}
            s_and_b32 {s(sT1)}, {s(sWv)}, 1
            s_lshl_b32 {s(sT1)}, {s(sT1)}, 6
            s_add_u32 {s(sHB)}, {s(sT0)}, {s(sT1)}""")
        xq = deque((lambda j=j: A.vmem(f"buffer_load_dwordx2 {v(XR+2*j,2)}, {v(vPD)}, {srd(SX)}, {s(sHB)} offen offset:{16*j}", 'xr')) for j in range(4))
        def zreg(u, p): return vACC + 32*(u & 1) + 16*p
        def z_mfmas(u):
            out = []
            for ks in range(2):
                for o, p, cst in ((0, 0, 0), (1, 1, 0), (0, 1, 16), (1, 0, 8)):
                    d = v(zreg(u, o), 16)
                    first = ks == 0 and cst == 0
                    out.append(f"v_mfma_f32_32x32x16_bf16 {d}, {a(vfr(u,p,ks),4)}, {a(aE+cst+4*ks,4)}, {0 if first else d}")
            return out
        def z_cvt(u):
            return [f"v_cvt_pk_bf16_f32 {v(zreg(u,p)+k)}, {v(zreg(u,p)+2*k)}, {v(zreg(u,p)+2*k+1)}" for p in range(2) for k in range(8)]
        def y_mfmas(u):
            b, fi = u >> 1, u & 1
            out = []
            for p in range(2):
                for t in range(2):
                    for aa in range(2):
                        acc = a(aACC + 16*(aa + 2*b), 16)
                        out.append(f"v_mfma_f32_32x32x16_bf16 {acc}, {a(self.gidx(fi,p,t,aa),4)}, {v(zreg(u,p)+4*t,4)}, {acc}")
            return out
        def run(mf, fill, per, skip=0):
            fill = deque(fill)
            for k, m in enumerate(mf):
                e(m)
                if k & 1:
                    if not self.run_vq() and xq: xq.popleft()()
                if k < skip: continue
                for _ in range(per):
                    if fill:
                        f = fill.popleft()
                        e(f) if isinstance(f, str) else f()
            while fill:
                f = fill.popleft()
                e(f) if isinstance(f, str) else f()
        A.wait(lg=('vf', 0))
        run(z_mfmas(0), [], 0)
        for u in range(4):
            if u + 1 < 4:
                A.wait(lg=('vf', u + 1))
                run(z_mfmas(u + 1), z_cvt(u), 4, skip=2)
                run(y_mfmas(u), v_reads(u + 2) if u + 2 < 4 else [], 2)
            else:
                for t in z_cvt(u): e(t)
                run(y_mfmas(u), [], 0)
        while xq: xq.popleft()()
        self.stamp(7)
        e(f"v_add_u32 v0, {s(sW4K)}, {v(vL16)}")
        for q in (1, 2, 3):
            for k in range(4):
                A.ds(f"ds_write_b128 v0, {a(aACC+16*q+4*k,4)} offset:{(q-1)*SLOT + k*1024}", 'redw')
        S = vACC
        A.wait(vm='xr')
        for r in range(16):
            e(f"v_accvgpr_read_b32 {v(S+r)}, {a(aACC+r)}")
        for j in range(8):
            e(f"v_lshlrev_b32 {v(S+16)}, 16, {v(XR+j)}\nv_and_b32 {v(S+17)}, 0xffff0000, {v(XR+j)}")
            e(f"v_add_f32 {v(S+2*j)}, {v(S+2*j)}, {v(S+16)}\nv_add_f32 {v(S+2*j+1)}, {v(S+2*j+1)}, {v(S+17)}")
        A.wait(lg='redw')
        e("s_barrier")
        for q in (1, 2, 3):
            e(f"v_xor_b32 v3, {q*4096}, v0")
            for k in range(4):
                A.ds(f"ds_read_b128 {v(S+16*q+4*k,4)}, v3 offset:{(q-1)*SLOT + k*1024}", ('redr', q))
        for q in (1, 2, 3):
            A.wait(lg=('redr', q))
            for r in range(16): e(f"v_add_f32 {v(S+r)}, {v(S+r)}, {v(S+16*q+r)}")
        O = S + 16
        for k in range(8): e(f"v_cvt_pk_bf16_f32 {v(O+k)}, {v(S+2*k)}, {v(S+2*k+1)}")
        for j in range(2):
            e(f"v_permlane32_swap_b32 {v(O+4*j)}, {v(O+4*j+2)}\nv_permlane32_swap_b32 {v(O+4*j+1)}, {v(O+4*j+3)}")
        for j in range(2):
            A.vmem(f"buffer_store_dwordx4 {v(O+4*j,4)}, {v(vPD+1)}, {srd(SO)}, {s(sHB)} offen offset:{32*j}", 'out')
        self.stamp(8)
    N_HBCHK, N_VPOLL, N_VCHK = 5, 14, 18
    def build(self):
        A = self.A; e = self.e
        self.prologue()
        self.stamp(0)
        st0 = A.state()
        e(f"s_cmp_eq_u32 {s(sJQ)}, 3\ns_cbranch_scc1 L_light")
        for light in (False, True):
            if light:
                e("L_light:\ns_nop 4"); A.set_state(st0)
            self.phase1(light)
            if self.stop != 'p1':
                self.t2()
                if self.stop != 't2': self.gemm2()
            e("s_endpgm")
        hdr = open(__file__.replace("gen.py", "header.txt")).read()
        body = A.text() + "\n" + "\n".join(self.ool) + "\nL_end:\n    s_endpgm\n"
        return (hdr + f"; @launch grid=(256,1,1) block=(256,1,1) lds=163840\n"
                f'.amdgcn_target "amdgcn-amd-amdhsa--gfx950"\n.text\n.globl {KN}\n.p2align 8\n.type {KN},@function\n{KN}:\n' + body +
                f'''.section .rodata,"a"
.p2align 6
.amdhsa_kernel {KN}
  .amdhsa_next_free_vgpr 512
  .amdhsa_next_free_sgpr 102
  .amdhsa_accum_offset 256
  .amdhsa_group_segment_fixed_size 0
  .amdhsa_kernarg_size 80
  .amdhsa_user_sgpr_count 2
  .amdhsa_user_sgpr_kernarg_segment_ptr 1
  .amdhsa_system_sgpr_workgroup_id_x 1
.end_amdhsa_kernel
''')

if __name__ == "__main__":
    import argparse
    ap = argparse.ArgumentParser()
    ap.add_argument("-o", default="cdna_kernels/" + NAME + ".s")
    ap.add_argument("--stop"); ap.add_argument("--stamps", action="store_true")
    x = ap.parse_args()
    open(x.o, "w").write(Gen(stop=x.stop, stamps=x.stamps).build())
```
